```python
import torch

def _softmax(x, axis=-1):
    return torch.softmax(x, dim=axis)

def _gelu(x):
    return torch.nn.functional.gelu(x, approximate='tanh')

def _silu(x):
    return torch.nn.functional.silu(x)

def _sigmoid(x):
    return torch.sigmoid(x)

def _layernorm(x, axis=-1, eps=1e-05):
    m = x.mean(dim=axis, keepdim=True)
    v = x.var(dim=axis, keepdim=True, unbiased=False)
    return (x - m) / torch.sqrt(v + eps)

def _scatter_add(tgt, idx, src, axis=0):
    return tgt.clone().index_add_(axis, idx, src)

def _segment_sum(src, seg, n):
    out = torch.zeros((n,) + src.shape[1:], dtype=src.dtype)
    return out.index_add_(0, seg, src)

def _pad(x, pw):
    flat = tuple((v for pair in reversed(pw) for v in pair))
    return torch.nn.functional.pad(x, flat)
kernel_name = 'sequential_preLN__spectral_gfnet__mixer_gmlp__prompt'

def setup_inputs():

    _w = lambda a: (lambda t: t.to(torch.bfloat16) if t.is_floating_point() else t)(torch.as_tensor(a))

    def _A_setup():
        B, S, D = (1, 2048, 512)
        Df = D // 2 + 1
        return {'x': _w((lambda *s: torch.randn(*s, dtype=torch.bfloat16) * 0.05)(B, S, D)), 'w_r': _w((lambda *s: torch.randn(*s, dtype=torch.bfloat16) * 0.4)(S, Df) * 0.02), 'w_i': _w((lambda *s: torch.randn(*s, dtype=torch.bfloat16) * 0.4)(S, Df) * 0.02)}
    _A_in = _A_setup()

    def _B_setup():
        B, S, D, F = (1, 2048, 512, 1376)
        Fh = F // 2
        return {'x': _w((lambda *s: torch.randn(*s, dtype=torch.bfloat16) * 0.05)(B, S, D)), 'w_in': _w((lambda *s: torch.randn(*s, dtype=torch.bfloat16) * 0.4)(D, 2 * Fh)), 'w_sp': _w(0.01 * (lambda *s: torch.randn(*s, dtype=torch.bfloat16) * 0.4)(S, S)), 'b_sp': _w(1.0 + 0.01 * (lambda *s: torch.randn(*s, dtype=torch.bfloat16) * 0.05)(S)), 'w_out': _w((lambda *s: torch.randn(*s, dtype=torch.bfloat16) * 0.05)(Fh, D))}
    _B_in = _B_setup()
    return {'A_x': _A_in['x'], 'A_w_r': _A_in['w_r'], 'A_w_i': _A_in['w_i'], 'B_x': _B_in['x'], 'B_w_in': _B_in['w_in'], 'B_w_sp': _B_in['w_sp'], 'B_b_sp': _B_in['b_sp'], 'B_w_out': _B_in['w_out']}

def reference(A_x, A_w_r, A_w_i, B_x, B_w_in, B_w_sp, B_b_sp, B_w_out):

    def _A_ref(x, w_r, w_i):
        B, S, D = x.shape
        X = (lambda x, axes=(-2, -1): torch.fft.rfft2(x.float(), dim=axes))(x, axes=(-2, -1))
        W = w_r + 1j * w_i
        X = X * W
        y = (lambda x, s, axes=(-2, -1): torch.fft.irfft2(x, s=s, dim=axes).to(torch.bfloat16))(X, (S, D), axes=(-2, -1))
        return y

    def _B_ref(x, w_in, w_sp, b_sp, w_out):
        B, S, D = x.shape
        F = w_in.shape[-1]
        Fh = F // 2
        z = _gelu(torch.einsum('bsd,df->bsf', x, w_in))
        z1 = z[..., :Fh].clone()
        z2 = _layernorm(z[..., Fh:], axis=-1)
        g = torch.einsum('ts,bsf->btf', w_sp, z2) + b_sp[None, :, None]
        return torch.einsum('bsf,fd->bsd', z1 * g, w_out)
    x = A_x
    h = x + _A_ref(_layernorm(x, axis=-1), A_w_r, A_w_i)
    h2 = h + _B_ref(_layernorm(h, axis=-1), B_w_in, B_w_sp, B_b_sp, B_w_out)
    return h2
```

```python
import re, struct

TRANS = ('v_exp_f32', 'v_log_f32', 'v_rcp_f32', 'v_rsq_f32', 'v_sqrt_f32', 'v_sin_f32', 'v_cos_f32',
         'v_exp_f16', 'v_rcp_f16', 'v_rcp_iflag_f32')
NO_DST_S = ('s_cmp', 's_waitcnt', 's_barrier', 's_branch', 's_cbranch', 's_nop', 's_endpgm', 's_sleep',
            's_setprio', 's_bitcmp', 's_setpc', 's_setreg')


def f2u(x):
    return struct.unpack('<I', struct.pack('<f', x))[0]


def fl(x):
    return '0x%08x' % f2u(x)


def v(i, n=1):
    return f'v{i}' if n == 1 else f'v[{i}:{i + n - 1}]'


def a(i, n=1):
    return f'a{i}' if n == 1 else f'a[{i}:{i + n - 1}]'


def s(i, n=1):
    return f's{i}' if n == 1 else f's[{i}:{i + n - 1}]'


_reg_re = re.compile(r'^(-|neg\()?(abs\(|\|)?([vas])(\d+|\[(\d+):(\d+)\])')


def regs_of(op):
    op = op.strip()
    if op in ('vcc',):
        return [('s', 106), ('s', 107)]
    if op == 'vcc_lo':
        return [('s', 106)]
    if op == 'vcc_hi':
        return [('s', 107)]
    if op == 'exec':
        return [('s', 126), ('s', 127)]
    if op == 'm0':
        return [('s', 124)]
    m = _reg_re.match(op)
    if not m:
        return []
    k = m.group(3)
    if m.group(5) is not None:
        return [(k, i) for i in range(int(m.group(5)), int(m.group(6)) + 1)]
    return [(k, int(m.group(4)))]


class Ins:
    def __init__(self, text):
        self.text = text
        t = text.split(';')[0].strip()
        self.label = t.endswith(':')
        self.mn = '' if self.label else t.split()[0]
        rest = '' if self.label else t[len(self.mn):].strip()
        ops, depth, cur = [], 0, ''
        for ch in rest:
            if ch in '[(':
                depth += 1
            if ch in '])':
                depth -= 1
            if ch == ',' and depth == 0:
                ops.append(cur.strip()); cur = ''
            else:
                cur += ch
        if cur.strip():
            ops.append(cur.strip())
        self.mods = ''
        if ops:
            parts = ops[-1].split(None, 1)
            ops[-1] = parts[0]
            if len(parts) > 1:
                self.mods = parts[1]
        self.ops = ops
        mn = self.mn
        self.is_mfma = mn.startswith('v_mfma')
        self.is_valu = mn.startswith('v_') and not self.is_mfma
        self.is_trans = any(mn.startswith(x) for x in TRANS)
        self.is_vmem = mn.startswith(('buffer_', 'global_', 'flat_'))
        self.is_ds = mn.startswith('ds_')
        self.is_salu = mn.startswith('s_')
        self.is_dpp = '_dpp' in mn or 'row_' in self.mods or 'quad_perm' in self.mods
        self.is_lds_dma = self.is_vmem and (re.search(r'\blds\b', self.mods) is not None or 'load_lds' in mn)
        self.is_perm = mn.startswith(('v_permlane', 'v_swap'))
        self.is_rl = mn.startswith(('v_readlane', 'v_readfirstlane'))
        self.is_dot = mn.startswith('v_dot')
        R = [regs_of(o) for o in ops]
        dst, src = [], []
        if self.label or not ops:
            pass
        elif self.is_mfma:
            dst = R[0]; src = R[1] + R[2] + R[3]
            self.srcC = R[3]; self.srcAB = R[1] + R[2]
            self.passes = 8 if '32x32' in mn else 4
        elif self.is_perm:
            dst = R[0] + R[1]; src = R[0] + R[1]
        elif self.is_valu:
            dst = R[0]; src = sum(R[1:], [])
            if mn.startswith(('v_add_co', 'v_sub_co', 'v_addc_co', 'v_subb_co', 'v_div_scale', 'v_mad_u64_u32')):
                dst = R[0] + R[1]; src = sum(R[2:], [])
            if mn.startswith(('v_fmac', 'v_dot2c', 'v_pk_fmac', 'v_writelane')) or self.is_dpp:
                src = src + R[0]
            if mn.startswith('v_cndmask') and len(ops) == 3:
                src = src + regs_of('vcc')
            if mn.startswith('v_cmpx'):
                dst = dst + regs_of('exec')
        elif self.is_ds:
            if mn.startswith(('ds_read', 'ds_bpermute', 'ds_permute', 'ds_swizzle')) or '_rtn' in mn:
                dst = R[0]; src = sum(R[1:], [])
            else:
                src = sum(R, [])
        elif self.is_vmem:
            if 'load' in mn and not self.is_lds_dma:
                dst = R[0]; src = sum(R[1:], [])
            elif 'atomic' in mn and 'sc0' in self.mods:
                dst = R[0]; src = sum(R, [])
            else:
                src = sum(R, [])
            if self.is_lds_dma:
                src = src + regs_of('m0')
        elif self.is_salu:
            if mn.startswith(NO_DST_S):
                src = sum(R, [])
            else:
                dst = R[0]; src = sum(R[1:], [])
                if 'saveexec' in mn:
                    dst = dst + regs_of('exec')
        self.dst = set(dst); self.src = set(src)
        self.wide_store = self.is_vmem and 'store' in mn and ('x3' in mn or 'x4' in mn)
        if self.wide_store:
            self.sdata = set(R[0]) if mn.startswith('buffer') else set(R[1])
        self.states = 1
        if mn == 's_nop':
            self.states = int(ops[0], 0) + 1
        if self.label:
            self.states = 0


XDL_C_OVER = {4: 6, 8: 10}
XDL_AB = {4: 8, 8: 12}
XDL_WAR = {4: 3, 8: 7}
EXEC = set(regs_of('exec'))
M0 = set(regs_of('m0'))


def need(p, c):
    n = 0
    pv = {r for r in p.dst if r[0] in 'va'}
    ps = {r for r in p.dst if r[0] == 's'}
    if p.is_mfma:
        if c.is_mfma:
            if pv & set(c.srcAB):
                n = max(n, XDL_AB[p.passes])
            cc = set(c.srcC)
            if pv & cc:
                if not (cc == pv and c.passes == p.passes):
                    n = max(n, XDL_C_OVER[p.passes])
            elif pv & c.dst:
                n = max(n, XDL_C_OVER[p.passes])
        elif c.is_valu or c.is_vmem or c.is_ds:
            if pv & (c.src | c.dst):
                n = max(n, XDL_AB[p.passes])
        if (c.is_valu or c.is_vmem or c.is_ds) and set(p.srcC) & c.dst:
            n = max(n, XDL_WAR[p.passes])
    if p.is_valu:
        if c.is_mfma and pv & c.src:
            n = max(n, 3 if p.is_dot else 2)
        if p.is_dot and (c.is_valu or c.is_vmem or c.is_ds) and pv & (c.src | c.dst):
            if not (c.mn == p.mn and c.dst == p.dst and not (pv & set(sum([regs_of(o) for o in c.ops[1:3]], [])))):
                n = max(n, 3)
        if p.is_trans and c.is_valu and not c.is_trans and pv & c.src:
            n = max(n, 1)
        if p.is_trans and (c.is_vmem or c.is_ds) and pv & c.src:
            n = max(n, 1)
        if c.is_dpp and pv & c.src:
            n = max(n, 2)
        if c.is_rl and pv & c.src:
            n = max(n, 1)
        if c.is_perm and pv & c.src:
            n = max(n, 2)
        if ps:
            if c.is_valu and ps & c.src:
                n = max(n, 4 if (c.is_rl or c.mn.startswith('v_writelane')) else 2)
            if c.is_mfma and ps & c.src:
                n = max(n, 2)
            if c.is_vmem and ps & c.src:
                n = max(n, 5)
            if c.is_salu and ps & c.src:
                n = max(n, 1)
            if ps & EXEC:
                if c.is_dpp: n = max(n, 5)
                if c.is_mfma or c.is_rl or c.is_perm: n = max(n, 4)
        if ('op_sel' in p.mods and not p.mn.startswith('v_pk_')) or 'dst_sel' in p.mods or 'sdwa' in p.mn:
            if c.is_valu and pv & (c.src | c.dst):
                n = max(n, 1)
    if p.is_salu and ps & M0 and (c.is_lds_dma or 'addtid' in c.mn):
        n = max(n, 1)
    if p.wide_store and p.sdata & c.dst:
        n = max(n, 2 if c.is_valu else 1)
    return n


class Prog:
    def __init__(self):
        self.L = []

    def e(self, text):
        for ln in text.split('\n'):
            ln = ln.strip()
            if ln:
                self.L.append(ln)

    __call__ = e

    def finalize(self):
        out = []
        hists = [[]]
        saved = {}
        seen = {}
        back = []
        nops = 0

        def required(hist, ins):
            dist = 0; req = 0
            for p in reversed(hist):
                n = need(p, ins)
                if n - dist > req:
                    req = n - dist
                dist += p.states
                if dist > 20:
                    break
            return req

        for t in self.L:
            if t.startswith(('.', ';')) and not t.endswith(':'):
                out.append((t, None)); continue
            ins = Ins(t)
            if ins.label:
                name = t.split(':')[0].strip()
                seen[name] = len(out)
                hists = hists + saved.pop(name, [])
                if not hists:
                    hists = [[]]
                out.append((t, ins)); continue
            req = max(required(h, ins) for h in hists) if hists else 0
            while req > 0:
                k = min(req, 16)
                nop = Ins(f's_nop {k - 1}')
                out.append((f'  s_nop {k - 1}', nop)); nops += 1
                for h in hists: h.append(nop)
                req -= k
            for h in hists: h.append(ins)
            hists = [h[-24:] for h in hists]
            uniq = []
            for h in hists:
                if not any(len(u) == len(h) and all(x is y for x, y in zip(u, h)) for u in uniq):
                    uniq.append(h)
            hists = uniq
            out.append(('  ' + t, ins))
            if ins.mn.startswith(('s_branch', 's_cbranch')):
                tgt = ins.ops[0]
                if tgt in seen:
                    back.append((tgt, [list(h) for h in hists]))
                else:
                    saved.setdefault(tgt, []).extend([list(h) for h in hists])
            if ins.mn in ('s_endpgm', 's_branch'):
                hists = []
        for tgt, hs in back:
            for h in hs:
                h = list(h); n = 0
                for (t, ins) in out[seen[tgt]:]:
                    if ins is None or ins.label: continue
                    r = required(h, ins)
                    assert r <= 0, f'hazard across back edge to {tgt}: {t} needs {r} more'
                    h.append(ins); n += ins.states
                    if n > 20 or ins.mn in ('s_endpgm', 's_branch'): break
        assert not saved, saved.keys()
        self.nops = nops
        return '\n'.join(t for t, _ in out) + '\n'


def header(launches, extra=''):
    s_ = extra
    for (k, g, b, lds) in launches:
        s_ += f'; @launch kernel={k} grid=({g},1,1) block=({b},1,1) lds={lds}\n'
    s_ += '.amdgcn_target "amdgcn-amd-amdhsa--gfx950"\n.text\n'
    return s_


def kbegin(name):
    return f'.globl {name}\n.p2align 8\n.type {name},@function\n{name}:\n'


def kdesc(name, vgpr, sgpr=102, accum=None):
    if accum is None:
        accum = min(256, (vgpr + 3) // 4 * 4)
    return f'''.p2align 6
.amdhsa_kernel {name}
  .amdhsa_next_free_vgpr {vgpr}
  .amdhsa_next_free_sgpr {sgpr}
  .amdhsa_accum_offset {accum}
  .amdhsa_group_segment_fixed_size 0
  .amdhsa_kernarg_size 88
  .amdhsa_user_sgpr_count 2
  .amdhsa_user_sgpr_kernarg_segment_ptr 1
  .amdhsa_system_sgpr_workgroup_id_x 1
  .amdhsa_float_denorm_mode_32 3
  .amdhsa_float_denorm_mode_16_64 3
.end_amdhsa_kernel
'''
```

```python
import sys, importlib
from asmlib import *
COMMENT = open('sequential_preLN__spectral_gfnet__mixer_gmlp__prompt.s.ref').read().split('; Override launch')[0]
def build(names, out):
    mods = [importlib.import_module(n) for n in names]
    launches = [(f'{n}_kernel', m.GRID, getattr(m, 'BLOCK', 256), m.LDS) for n, m in zip(names, mods)]
    txt = header(launches, COMMENT)
    for n, m in zip(names, mods):
        P = Prog(); m.gen(P)
        body = P.finalize()
        txt += kbegin(f'{n}_kernel') + body
        print(n, 'instrs', len(P.L), 'nops', P.nops, file=sys.stderr)
    txt += '.section .rodata,"a"\n'
    for n, m in zip(names, mods):
        txt += kdesc(f'{n}_kernel', m.VGPR, getattr(m, 'SGPR', 96), getattr(m, 'ACCUM', None))
    open(out, 'w').write(txt)
if __name__ == '__main__':
    build(sys.argv[2:], sys.argv[1])
```

```python
import re, struct

TRANS = ('v_exp_f32', 'v_log_f32', 'v_rcp_f32', 'v_rsq_f32', 'v_sqrt_f32', 'v_sin_f32', 'v_cos_f32',
         'v_exp_f16', 'v_rcp_f16', 'v_rcp_iflag_f32')
NO_DST_S = ('s_cmp', 's_waitcnt', 's_barrier', 's_branch', 's_cbranch', 's_nop', 's_endpgm', 's_sleep',
            's_setprio', 's_bitcmp', 's_setpc', 's_setreg')


def f2u(x):
    return struct.unpack('<I', struct.pack('<f', x))[0]


def fl(x):
    return '0x%08x' % f2u(x)


def v(i, n=1):
    return f'v{i}' if n == 1 else f'v[{i}:{i + n - 1}]'


def a(i, n=1):
    return f'a{i}' if n == 1 else f'a[{i}:{i + n - 1}]'


def s(i, n=1):
    return f's{i}' if n == 1 else f's[{i}:{i + n - 1}]'


_reg_re = re.compile(r'^(-|neg\()?(abs\(|\|)?([vas])(\d+|\[(\d+):(\d+)\])')


def regs_of(op):
    op = op.strip()
    if op in ('vcc',):
        return [('s', 106), ('s', 107)]
    if op == 'vcc_lo':
        return [('s', 106)]
    if op == 'vcc_hi':
        return [('s', 107)]
    if op == 'exec':
        return [('s', 126), ('s', 127)]
    if op == 'm0':
        return [('s', 124)]
    m = _reg_re.match(op)
    if not m:
        return []
    k = m.group(3)
    if m.group(5) is not None:
        return [(k, i) for i in range(int(m.group(5)), int(m.group(6)) + 1)]
    return [(k, int(m.group(4)))]


class Ins:
    def __init__(self, text):
        self.text = text
        t = text.split(';')[0].strip()
        self.label = t.endswith(':')
        self.mn = '' if self.label else t.split()[0]
        rest = '' if self.label else t[len(self.mn):].strip()
        ops, depth, cur = [], 0, ''
        for ch in rest:
            if ch in '[(':
                depth += 1
            if ch in '])':
                depth -= 1
            if ch == ',' and depth == 0:
                ops.append(cur.strip()); cur = ''
            else:
                cur += ch
        if cur.strip():
            ops.append(cur.strip())
        self.mods = ''
        if ops:
            parts = ops[-1].split(None, 1)
            ops[-1] = parts[0]
            if len(parts) > 1:
                self.mods = parts[1]
        self.ops = ops
        mn = self.mn
        self.is_mfma = mn.startswith('v_mfma')
        self.is_valu = mn.startswith('v_') and not self.is_mfma
        self.is_trans = any(mn.startswith(x) for x in TRANS)
        self.is_vmem = mn.startswith(('buffer_', 'global_', 'flat_'))
        self.is_ds = mn.startswith('ds_')
        self.is_salu = mn.startswith('s_')
        self.is_dpp = '_dpp' in mn or 'row_' in self.mods or 'quad_perm' in self.mods
        self.is_lds_dma = self.is_vmem and (re.search(r'\blds\b', self.mods) is not None or 'load_lds' in mn)
        self.is_perm = mn.startswith(('v_permlane', 'v_swap'))
        self.is_rl = mn.startswith(('v_readlane', 'v_readfirstlane'))
        self.is_dot = mn.startswith('v_dot')
        R = [regs_of(o) for o in ops]
        dst, src = [], []
        if self.label or not ops:
            pass
        elif self.is_mfma:
            dst = R[0]; src = R[1] + R[2] + R[3]
            self.srcC = R[3]; self.srcAB = R[1] + R[2]
            self.passes = 8 if '32x32' in mn else 4
        elif self.is_perm:
            dst = R[0] + R[1]; src = R[0] + R[1]
        elif self.is_valu:
            dst = R[0]; src = sum(R[1:], [])
            if mn.startswith(('v_add_co', 'v_sub_co', 'v_addc_co', 'v_subb_co', 'v_div_scale', 'v_mad_u64_u32')):
                dst = R[0] + R[1]; src = sum(R[2:], [])
            if mn.startswith(('v_fmac', 'v_dot2c', 'v_pk_fmac', 'v_writelane')) or self.is_dpp:
                src = src + R[0]
            if mn.startswith('v_cndmask') and len(ops) == 3:
                src = src + regs_of('vcc')
            if mn.startswith('v_cmpx'):
                dst = dst + regs_of('exec')
        elif self.is_ds:
            if mn.startswith(('ds_read', 'ds_bpermute', 'ds_permute', 'ds_swizzle')) or '_rtn' in mn:
                dst = R[0]; src = sum(R[1:], [])
            else:
                src = sum(R, [])
        elif self.is_vmem:
            if 'load' in mn and not self.is_lds_dma:
                dst = R[0]; src = sum(R[1:], [])
            elif 'atomic' in mn and 'sc0' in self.mods:
                dst = R[0]; src = sum(R, [])
            else:
                src = sum(R, [])
            if self.is_lds_dma:
                src = src + regs_of('m0')
        elif self.is_salu:
            if mn.startswith(NO_DST_S):
                src = sum(R, [])
            else:
                dst = R[0]; src = sum(R[1:], [])
                if 'saveexec' in mn:
                    dst = dst + regs_of('exec')
        self.dst = set(dst); self.src = set(src)
        self.wide_store = self.is_vmem and 'store' in mn and ('x3' in mn or 'x4' in mn)
        if self.wide_store:
            self.sdata = set(R[0]) if mn.startswith('buffer') else set(R[1])
        self.states = 1
        if mn == 's_nop':
            self.states = int(ops[0], 0) + 1
        if self.label:
            self.states = 0


XDL_C_OVER = {4: 6, 8: 10}
XDL_AB = {4: 8, 8: 12}
XDL_WAR = {4: 3, 8: 7}
EXEC = set(regs_of('exec'))
M0 = set(regs_of('m0'))


def need(p, c):
    n = 0
    pv = {r for r in p.dst if r[0] in 'va'}
    ps = {r for r in p.dst if r[0] == 's'}
    if p.is_mfma:
        if c.is_mfma:
            if pv & set(c.srcAB):
                n = max(n, XDL_AB[p.passes])
            cc = set(c.srcC)
            if pv & cc:
                if not (cc == pv and c.passes == p.passes):
                    n = max(n, XDL_C_OVER[p.passes])
            elif pv & c.dst:
                n = max(n, XDL_C_OVER[p.passes])
        elif c.is_valu or c.is_vmem or c.is_ds:
            if pv & (c.src | c.dst):
                n = max(n, XDL_AB[p.passes])
        if (c.is_valu or c.is_vmem or c.is_ds) and set(p.srcC) & c.dst:
            n = max(n, XDL_WAR[p.passes])
    if p.is_valu:
        if c.is_mfma and pv & c.src:
            n = max(n, 3 if p.is_dot else 2)
        if p.is_dot and (c.is_valu or c.is_vmem or c.is_ds) and pv & (c.src | c.dst):
            if not (c.mn == p.mn and c.dst == p.dst and not (pv & set(sum([regs_of(o) for o in c.ops[1:3]], [])))):
                n = max(n, 3)
        if p.is_trans and c.is_valu and not c.is_trans and pv & c.src:
            n = max(n, 1)
        if p.is_trans and (c.is_vmem or c.is_ds) and pv & c.src:
            n = max(n, 1)
        if c.is_dpp and pv & c.src:
            n = max(n, 2)
        if c.is_rl and pv & c.src:
            n = max(n, 1)
        if c.is_perm and pv & c.src:
            n = max(n, 2)
        if ps:
            if c.is_valu and ps & c.src:
                n = max(n, 4 if (c.is_rl or c.mn.startswith('v_writelane')) else 2)
            if c.is_mfma and ps & c.src:
                n = max(n, 2)
            if c.is_vmem and ps & c.src:
                n = max(n, 5)
            if c.is_salu and ps & c.src:
                n = max(n, 1)
            if ps & EXEC:
                if c.is_dpp: n = max(n, 5)
                if c.is_mfma or c.is_rl or c.is_perm: n = max(n, 4)
        if ('op_sel' in p.mods and not p.mn.startswith('v_pk_')) or 'dst_sel' in p.mods or 'sdwa' in p.mn:
            if c.is_valu and pv & (c.src | c.dst):
                n = max(n, 1)
    if p.is_salu and ps & M0 and (c.is_lds_dma or 'addtid' in c.mn):
        n = max(n, 1)
    if p.wide_store and p.sdata & c.dst:
        n = max(n, 2 if c.is_valu else 1)
    return n


STAMP_OFF = 24 << 20

class Prog:
    def __init__(self, prof=None):
        self.L = []
        self.prof = prof
        self.nend = 0

    def stamp(self, i):
        if self.prof is not None:
            self.L.append(f's_memrealtime s[{76+2*i}:{77+2*i}]')

    def end(self):
        if self.prof is None:
            self.L.append('s_endpgm'); return
        e = self.L.append
        e('s_waitcnt vmcnt(0)')
        e('s_memrealtime s[90:91]')
        e('s_load_dwordx2 s[92:93], s[0:1], 80')
        e('v_lshrrev_b32 v1, 6, v0'); e('v_lshlrev_b32 v1, 5, v1')
        e('v_and_b32 v0, 63, v0')
        e('s_waitcnt lgkmcnt(0)')
        e('s_and_b32 s93, s93, 0xffff'); e('s_mov_b32 s94, 0x2000000'); e('s_mov_b32 s95, 0x20000')
        for i in range(8): e(f'v_mov_b32 v{4+i}, s{76+2*i}')
        e('s_lshl_b32 s76, s2, 9'); e(f's_add_u32 s76, s76, {STAMP_OFF + self.prof * (1 << 19)}')
        e('s_mov_b64 exec, 1')
        e('buffer_store_dwordx4 v[4:7], v1, s[92:95], s76 offen')
        e('buffer_store_dwordx4 v[8:11], v1, s[92:95], s76 offen offset:16')
        e('s_endpgm')

    def e(self, text):
        for ln in text.split('\n'):
            ln = ln.strip()
            if ln:
                self.L.append(ln)

    __call__ = e

    def finalize(self):
        out = []
        hists = [[]]
        saved = {}
        seen = {}
        back = []
        nops = 0

        def required(hist, ins):
            dist = 0; req = 0
            for p in reversed(hist):
                n = need(p, ins)
                if n - dist > req:
                    req = n - dist
                dist += p.states
                if dist > 20:
                    break
            return req

        for t in self.L:
            if t.startswith(('.', ';')) and not t.endswith(':'):
                out.append((t, None)); continue
            ins = Ins(t)
            if ins.label:
                name = t.split(':')[0].strip()
                seen[name] = len(out)
                hists = hists + saved.pop(name, [])
                if not hists:
                    hists = [[]]
                out.append((t, ins)); continue
            req = max(required(h, ins) for h in hists) if hists else 0
            while req > 0:
                k = min(req, 16)
                nop = Ins(f's_nop {k - 1}')
                out.append((f'  s_nop {k - 1}', nop)); nops += 1
                for h in hists: h.append(nop)
                req -= k
            for h in hists: h.append(ins)
            hists = [h[-24:] for h in hists]
            uniq = []
            for h in hists:
                if not any(len(u) == len(h) and all(x is y for x, y in zip(u, h)) for u in uniq):
                    uniq.append(h)
            hists = uniq
            out.append(('  ' + t, ins))
            if ins.mn.startswith(('s_branch', 's_cbranch')):
                tgt = ins.ops[0]
                if tgt in seen:
                    back.append((tgt, [list(h) for h in hists]))
                else:
                    saved.setdefault(tgt, []).extend([list(h) for h in hists])
            if ins.mn in ('s_endpgm', 's_branch'):
                hists = []
        for tgt, hs in back:
            for h in hs:
                h = list(h); n = 0
                for (t, ins) in out[seen[tgt]:]:
                    if ins is None or ins.label: continue
                    r = required(h, ins)
                    assert r <= 0, f'hazard across back edge to {tgt}: {t} needs {r} more'
                    h.append(ins); n += ins.states
                    if n > 20 or ins.mn in ('s_endpgm', 's_branch'): break
        assert not saved, saved.keys()
        self.nops = nops
        return '\n'.join(t for t, _ in out) + '\n'


def header(launches, extra=''):
    s_ = extra
    for (k, g, b, lds) in launches:
        s_ += f'; @launch kernel={k} grid=({g},1,1) block=({b},1,1) lds={lds}\n'
    s_ += '.amdgcn_target "amdgcn-amd-amdhsa--gfx950"\n.text\n'
    return s_


def kbegin(name):
    return f'.globl {name}\n.p2align 8\n.type {name},@function\n{name}:\n'


def kdesc(name, vgpr, sgpr=102, accum=None):
    if accum is None:
        accum = min(256, (vgpr + 3) // 4 * 4)
    return f'''.p2align 6
.amdhsa_kernel {name}
  .amdhsa_next_free_vgpr {vgpr}
  .amdhsa_next_free_sgpr {sgpr}
  .amdhsa_accum_offset {accum}
  .amdhsa_group_segment_fixed_size 0
  .amdhsa_kernarg_size 88
  .amdhsa_user_sgpr_count 2
  .amdhsa_user_sgpr_kernarg_segment_ptr 1
  .amdhsa_system_sgpr_workgroup_id_x 1
  .amdhsa_float_denorm_mode_32 3
  .amdhsa_float_denorm_mode_16_64 3
.end_amdhsa_kernel
'''
```

```python
import sys, importlib
from asmlib import *
COMMENT = open('sequential_preLN__spectral_gfnet__mixer_gmlp__prompt.s.ref').read().split('; Override launch')[0]
def build(names, out, prof=False):
    mods = [importlib.import_module(n) for n in names]
    launches = [(f'{n}_kernel', m.GRID, getattr(m, 'BLOCK', 256), m.LDS) for n, m in zip(names, mods)]
    txt = header(launches, COMMENT)
    for ki, (n, m) in enumerate(zip(names, mods)):
        P = Prog(ki if prof else None); m.gen(P)
        body = P.finalize()
        txt += kbegin(f'{n}_kernel') + body
        print(n, 'instrs', len(P.L), 'nops', P.nops, file=sys.stderr)
    txt += '.section .rodata,"a"\n'
    for n, m in zip(names, mods):
        txt += kdesc(f'{n}_kernel', m.VGPR, (102 if prof else getattr(m, 'SGPR', 96)), getattr(m, 'ACCUM', None))
    open(out, 'w').write(txt)
if __name__ == '__main__':
    prof = sys.argv[1] == '-p'
    args = sys.argv[2:] if prof else sys.argv[1:]
    build(args[1:], args[0], prof)
```

```python
import re, struct

TRANS = ('v_exp_f32', 'v_log_f32', 'v_rcp_f32', 'v_rsq_f32', 'v_sqrt_f32', 'v_sin_f32', 'v_cos_f32',
         'v_exp_f16', 'v_rcp_f16', 'v_rcp_iflag_f32')
NO_DST_S = ('s_cmp', 's_waitcnt', 's_barrier', 's_branch', 's_cbranch', 's_nop', 's_endpgm', 's_sleep',
            's_setprio', 's_bitcmp', 's_setpc', 's_setreg')


def f2u(x):
    return struct.unpack('<I', struct.pack('<f', x))[0]


def fl(x):
    return '0x%08x' % f2u(x)


def v(i, n=1):
    return f'v{i}' if n == 1 else f'v[{i}:{i + n - 1}]'


def a(i, n=1):
    return f'a{i}' if n == 1 else f'a[{i}:{i + n - 1}]'


def s(i, n=1):
    return f's{i}' if n == 1 else f's[{i}:{i + n - 1}]'


_reg_re = re.compile(r'^(-|neg\()?(abs\(|\|)?([vas])(\d+|\[(\d+):(\d+)\])')


def regs_of(op):
    op = op.strip()
    if op in ('vcc',):
        return [('s', 106), ('s', 107)]
    if op == 'vcc_lo':
        return [('s', 106)]
    if op == 'vcc_hi':
        return [('s', 107)]
    if op == 'exec':
        return [('s', 126), ('s', 127)]
    if op == 'exec_lo':
        return [('s', 126)]
    if op == 'exec_hi':
        return [('s', 127)]
    if op == 'm0':
        return [('s', 124)]
    m = _reg_re.match(op)
    if not m:
        return []
    k = m.group(3)
    if m.group(5) is not None:
        return [(k, i) for i in range(int(m.group(5)), int(m.group(6)) + 1)]
    return [(k, int(m.group(4)))]


class Ins:
    def __init__(self, text):
        self.text = text
        t = text.split(';')[0].strip()
        self.label = t.endswith(':')
        self.mn = '' if self.label else t.split()[0]
        rest = '' if self.label else t[len(self.mn):].strip()
        ops, depth, cur = [], 0, ''
        for ch in rest:
            if ch in '[(':
                depth += 1
            if ch in '])':
                depth -= 1
            if ch == ',' and depth == 0:
                ops.append(cur.strip()); cur = ''
            else:
                cur += ch
        if cur.strip():
            ops.append(cur.strip())
        self.mods = ''
        if ops:
            parts = ops[-1].split(None, 1)
            ops[-1] = parts[0]
            if len(parts) > 1:
                self.mods = parts[1]
        self.ops = ops
        mn = self.mn
        self.is_mfma = mn.startswith('v_mfma')
        self.is_valu = mn.startswith('v_') and not self.is_mfma
        self.is_trans = any(mn.startswith(x) for x in TRANS)
        self.is_vmem = mn.startswith(('buffer_', 'global_', 'flat_'))
        self.is_ds = mn.startswith('ds_')
        self.is_salu = mn.startswith('s_')
        self.is_dpp = '_dpp' in mn or 'row_' in self.mods or 'quad_perm' in self.mods
        self.is_lds_dma = self.is_vmem and (re.search(r'\blds\b', self.mods) is not None or 'load_lds' in mn)
        self.is_perm = mn.startswith(('v_permlane', 'v_swap'))
        self.is_rl = mn.startswith(('v_readlane', 'v_readfirstlane'))
        self.is_dot = mn.startswith('v_dot')
        R = [regs_of(o) for o in ops]
        dst, src = [], []
        if self.label or not ops:
            pass
        elif self.is_mfma:
            dst = R[0]; src = R[1] + R[2] + R[3]
            self.srcC = R[3]; self.srcAB = R[1] + R[2]
            self.passes = 8 if '32x32' in mn else 4
        elif self.is_perm:
            dst = R[0] + R[1]; src = R[0] + R[1]
        elif self.is_valu:
            dst = R[0]; src = sum(R[1:], [])
            if mn.startswith(('v_add_co', 'v_sub_co', 'v_addc_co', 'v_subb_co', 'v_div_scale', 'v_mad_u64_u32')):
                dst = R[0] + R[1]; src = sum(R[2:], [])
            if mn.startswith(('v_fmac', 'v_dot2c', 'v_pk_fmac', 'v_writelane')) or self.is_dpp:
                src = src + R[0]
            if mn.startswith('v_cndmask') and len(ops) == 3:
                src = src + regs_of('vcc')
            if mn.startswith('v_cmpx'):
                dst = dst + regs_of('exec')
        elif self.is_ds:
            if mn.startswith(('ds_read', 'ds_bpermute', 'ds_permute', 'ds_swizzle')) or '_rtn' in mn:
                dst = R[0]; src = sum(R[1:], [])
            else:
                src = sum(R, [])
        elif self.is_vmem:
            if 'load' in mn and not self.is_lds_dma:
                dst = R[0]; src = sum(R[1:], [])
            elif 'atomic' in mn and 'sc0' in self.mods:
                dst = R[0]; src = sum(R, [])
            else:
                src = sum(R, [])
            if self.is_lds_dma:
                src = src + regs_of('m0')
        elif self.is_salu:
            if mn.startswith(NO_DST_S):
                src = sum(R, [])
            else:
                dst = R[0]; src = sum(R[1:], [])
                if 'saveexec' in mn:
                    dst = dst + regs_of('exec')
        self.dst = set(dst); self.src = set(src)
        self.wide_store = self.is_vmem and 'store' in mn and ('x3' in mn or 'x4' in mn)
        if self.wide_store:
            self.sdata = set(R[0]) if mn.startswith('buffer') else set(R[1])
        self.states = 1
        if mn == 's_nop':
            self.states = int(ops[0], 0) + 1
        if self.label:
            self.states = 0


XDL_C_OVER = {4: 6, 8: 10}
XDL_AB = {4: 8, 8: 12}
XDL_WAR = {4: 3, 8: 7}
EXEC = set(regs_of('exec'))
M0 = set(regs_of('m0'))


def need(p, c):
    n = 0
    pv = {r for r in p.dst if r[0] in 'va'}
    ps = {r for r in p.dst if r[0] == 's'}
    if p.is_mfma:
        if c.is_mfma:
            if pv & set(c.srcAB):
                n = max(n, XDL_AB[p.passes])
            cc = set(c.srcC)
            if pv & cc:
                if not (cc == pv and c.passes == p.passes):
                    n = max(n, XDL_C_OVER[p.passes])
            elif pv & c.dst:
                n = max(n, XDL_C_OVER[p.passes])
        elif c.is_valu or c.is_vmem or c.is_ds:
            if pv & (c.src | c.dst):
                n = max(n, XDL_AB[p.passes])
        if (c.is_valu or c.is_vmem or c.is_ds) and set(p.srcC) & c.dst:
            n = max(n, XDL_WAR[p.passes])
    if p.is_valu:
        if c.is_mfma and pv & c.src:
            n = max(n, 3 if p.is_dot else 2)
        if p.is_dot and (c.is_valu or c.is_vmem or c.is_ds) and pv & (c.src | c.dst):
            if not (c.mn == p.mn and c.dst == p.dst and not (pv & set(sum([regs_of(o) for o in c.ops[1:3]], [])))):
                n = max(n, 3)
        if p.is_trans and c.is_valu and not c.is_trans and pv & c.src:
            n = max(n, 1)
        if p.is_trans and (c.is_vmem or c.is_ds) and pv & c.src:
            n = max(n, 1)
        if c.is_dpp and pv & c.src:
            n = max(n, 2)
        if c.is_rl and pv & c.src:
            n = max(n, 1)
        if c.is_perm and pv & c.src:
            n = max(n, 2)
        if ps:
            if c.is_valu and ps & c.src:
                n = max(n, 4 if (c.is_rl or c.mn.startswith('v_writelane')) else 2)
            if c.is_mfma and ps & c.src:
                n = max(n, 2)
            if c.is_vmem and ps & c.src:
                n = max(n, 5)
            if c.is_salu and ps & c.src:
                n = max(n, 1)
            if ps & EXEC:
                if c.is_dpp: n = max(n, 5)
                if c.is_mfma or c.is_rl or c.is_perm: n = max(n, 4)
        if ('op_sel' in p.mods and not p.mn.startswith('v_pk_')) or 'dst_sel' in p.mods or 'sdwa' in p.mn:
            if c.is_valu and pv & (c.src | c.dst):
                n = max(n, 1)
    if p.is_salu and ps & M0 and (c.is_lds_dma or 'addtid' in c.mn):
        n = max(n, 1)
    if p.wide_store and p.sdata & c.dst:
        n = max(n, 2 if c.is_valu else 1)
    return n


STAMP_OFF = 24 << 20

class Prog:
    def __init__(self, prof=None):
        self.L = []
        self.prof = prof
        self.nend = 0

    def stamp(self, i):
        if self.prof is not None:
            r = 76 + 2*i if i < 7 else 96 + 2*(i - 8)
            self.L.append(f's_memrealtime s[{r}:{r+1}]')

    def mark(self, name):
        import os
        names = os.environ.get('STAMPS', '').split(',')
        if name in names:
            self.stamp([1, 2, 3, 4, 5, 6, 8, 9, 10][names.index(name)])

    def end(self):
        if self.prof is None:
            self.L.append('s_endpgm'); return
        e = self.L.append
        e('s_waitcnt vmcnt(0)')
        e('s_memrealtime s[90:91]')
        e('s_load_dwordx2 s[92:93], s[0:1], 80')
        e('v_lshrrev_b32 v1, 6, v0'); e('v_lshlrev_b32 v1, 6, v1')
        e('v_and_b32 v0, 63, v0')
        e('s_waitcnt lgkmcnt(0)')
        e('s_and_b32 s93, s93, 0xffff'); e('s_mov_b32 s94, 0x4000000'); e('s_mov_b32 s95, 0x20000')
        for i in range(8): e(f'v_mov_b32 v{4+i}, s{76+2*i}')
        for i in range(3): e(f'v_mov_b32 v{12+i}, s{96+2*i}')
        e('v_mov_b32 v15, 0')
        e('s_lshl_b32 s76, s2, 10'); e(f's_add_u32 s76, s76, {STAMP_OFF + self.prof * (1 << 20)}')
        e('s_mov_b64 exec, 1')
        e('buffer_store_dwordx4 v[4:7], v1, s[92:95], s76 offen')
        e('buffer_store_dwordx4 v[8:11], v1, s[92:95], s76 offen offset:16')
        e('buffer_store_dwordx4 v[12:15], v1, s[92:95], s76 offen offset:32')
        e('s_endpgm')

    def e(self, text):
        for ln in text.split('\n'):
            ln = ln.strip()
            if ln:
                self.L.append(ln)

    __call__ = e

    def finalize(self):
        out = []
        hists = [[]]
        saved = {}
        seen = {}
        back = []
        nops = 0

        def required(hist, ins):
            dist = 0; req = 0
            for p in reversed(hist):
                n = need(p, ins)
                if n - dist > req:
                    req = n - dist
                dist += p.states
                if dist > 20:
                    break
            return req

        for t in self.L:
            if t.startswith(('.', ';')) and not t.endswith(':'):
                out.append((t, None)); continue
            ins = Ins(t)
            if ins.label:
                name = t.split(':')[0].strip()
                seen[name] = len(out)
                hists = hists + saved.pop(name, [])
                if not hists:
                    hists = [[]]
                out.append((t, ins)); continue
            req = max(required(h, ins) for h in hists) if hists else 0
            while req > 0:
                k = min(req, 16)
                nop = Ins(f's_nop {k - 1}')
                out.append((f'  s_nop {k - 1}', nop)); nops += 1
                for h in hists: h.append(nop)
                req -= k
            for h in hists: h.append(ins)
            hists = [h[-24:] for h in hists]
            uniq = []
            for h in hists:
                if not any(len(u) == len(h) and all(x is y for x, y in zip(u, h)) for u in uniq):
                    uniq.append(h)
            hists = uniq
            out.append(('  ' + t, ins))
            if ins.mn.startswith(('s_branch', 's_cbranch')):
                tgt = ins.ops[0]
                if tgt in seen:
                    back.append((tgt, [list(h) for h in hists]))
                else:
                    saved.setdefault(tgt, []).extend([list(h) for h in hists])
            if ins.mn in ('s_endpgm', 's_branch'):
                hists = []
        for tgt, hs in back:
            for h in hs:
                h = list(h); n = 0
                for (t, ins) in out[seen[tgt]:]:
                    if ins is None or ins.label: continue
                    r = required(h, ins)
                    assert r <= 0, f'hazard across back edge to {tgt}: {t} needs {r} more'
                    h.append(ins); n += ins.states
                    if n > 20 or ins.mn in ('s_endpgm', 's_branch'): break
        assert not saved, saved.keys()
        self.nops = nops
        return '\n'.join(t for t, _ in out) + '\n'


class Cnt:
    def __init__(self, P, name, maxv):
        self.P = P; self.name = name; self.maxv = maxv; self.q = []; self.issued = set()
    def op(self, text, tag=None):
        self.P(text); self.q.append(tag); self.issued.add(tag)
    def wait(self, *tags):
        for t in tags: assert t in self.issued, t
        idx = -1
        for i, t in enumerate(self.q):
            if t in tags: idx = i
        if idx < 0: return
        n = len(self.q) - 1 - idx
        self.P(f's_waitcnt {self.name}({min(n, self.maxv)})')
        if n <= self.maxv: self.q = self.q[idx + 1:]
        else: self.q = self.q[len(self.q) - self.maxv:]
    def all(self):
        self.P(f's_waitcnt {self.name}(0)'); self.q = []
    def reset(self):
        self.q = []


def weave(P, main, fill, start=0, end=None):
    end = len(main) if end is None else end
    n = end - start; k = 0
    def go(x):
        if callable(x): x()
        else: P(x)
    for i, m in enumerate(main):
        go(m)
        if start <= i < end:
            tgt = (len(fill) * (i - start + 1) + n - 1) // n
            while k < tgt:
                go(fill[k]); k += 1
    while k < len(fill):
        go(fill[k]); k += 1


def header(launches, extra=''):
    s_ = extra
    for (k, g, b, lds) in launches:
        s_ += f'; @launch kernel={k} grid=({g},1,1) block=({b},1,1) lds={lds}\n'
    s_ += '.amdgcn_target "amdgcn-amd-amdhsa--gfx950"\n.text\n'
    return s_


def kbegin(name):
    return f'.globl {name}\n.p2align 8\n.type {name},@function\n{name}:\n'


def kdesc(name, vgpr, sgpr=102, accum=None):
    if accum is None:
        accum = min(256, (vgpr + 3) // 4 * 4)
    return f'''.p2align 6
.amdhsa_kernel {name}
  .amdhsa_next_free_vgpr {vgpr}
  .amdhsa_next_free_sgpr {sgpr}
  .amdhsa_accum_offset {accum}
  .amdhsa_group_segment_fixed_size 0
  .amdhsa_kernarg_size 88
  .amdhsa_user_sgpr_count 2
  .amdhsa_user_sgpr_kernarg_segment_ptr 1
  .amdhsa_system_sgpr_workgroup_id_x 1
  .amdhsa_float_denorm_mode_32 3
  .amdhsa_float_denorm_mode_16_64 3
.end_amdhsa_kernel
'''
```

```python
import re, struct

TRANS = ('v_exp_f32', 'v_log_f32', 'v_rcp_f32', 'v_rsq_f32', 'v_sqrt_f32', 'v_sin_f32', 'v_cos_f32',
         'v_exp_f16', 'v_rcp_f16', 'v_rcp_iflag_f32')
NO_DST_S = ('s_cmp', 's_waitcnt', 's_barrier', 's_branch', 's_cbranch', 's_nop', 's_endpgm', 's_sleep',
            's_setprio', 's_bitcmp', 's_setpc', 's_setreg')


def f2u(x):
    return struct.unpack('<I', struct.pack('<f', x))[0]


def fl(x):
    return '0x%08x' % f2u(x)


def v(i, n=1):
    return f'v{i}' if n == 1 else f'v[{i}:{i + n - 1}]'


def a(i, n=1):
    return f'a{i}' if n == 1 else f'a[{i}:{i + n - 1}]'


def s(i, n=1):
    return f's{i}' if n == 1 else f's[{i}:{i + n - 1}]'


_reg_re = re.compile(r'^(-|neg\()?(abs\(|\|)?([vas])(\d+|\[(\d+):(\d+)\])')


def regs_of(op):
    op = op.strip()
    if op in ('vcc',):
        return [('s', 106), ('s', 107)]
    if op == 'vcc_lo':
        return [('s', 106)]
    if op == 'vcc_hi':
        return [('s', 107)]
    if op == 'exec':
        return [('s', 126), ('s', 127)]
    if op == 'exec_lo':
        return [('s', 126)]
    if op == 'exec_hi':
        return [('s', 127)]
    if op == 'm0':
        return [('s', 124)]
    m = _reg_re.match(op)
    if not m:
        return []
    k = m.group(3)
    if m.group(5) is not None:
        return [(k, i) for i in range(int(m.group(5)), int(m.group(6)) + 1)]
    return [(k, int(m.group(4)))]


class Ins:
    def __init__(self, text):
        self.text = text
        t = text.split(';')[0].strip()
        self.label = t.endswith(':')
        self.mn = '' if self.label else t.split()[0]
        rest = '' if self.label else t[len(self.mn):].strip()
        ops, depth, cur = [], 0, ''
        for ch in rest:
            if ch in '[(':
                depth += 1
            if ch in '])':
                depth -= 1
            if ch == ',' and depth == 0:
                ops.append(cur.strip()); cur = ''
            else:
                cur += ch
        if cur.strip():
            ops.append(cur.strip())
        self.mods = ''
        if ops:
            parts = ops[-1].split(None, 1)
            ops[-1] = parts[0]
            if len(parts) > 1:
                self.mods = parts[1]
        self.ops = ops
        mn = self.mn
        self.is_mfma = mn.startswith('v_mfma')
        self.is_valu = mn.startswith('v_') and not self.is_mfma
        self.is_trans = any(mn.startswith(x) for x in TRANS)
        self.is_vmem = mn.startswith(('buffer_', 'global_', 'flat_'))
        self.is_ds = mn.startswith('ds_')
        self.is_salu = mn.startswith('s_')
        self.is_dpp = '_dpp' in mn or 'row_' in self.mods or 'quad_perm' in self.mods
        self.is_lds_dma = self.is_vmem and (re.search(r'\blds\b', self.mods) is not None or 'load_lds' in mn)
        self.is_perm = mn.startswith(('v_permlane', 'v_swap'))
        self.is_rl = mn.startswith(('v_readlane', 'v_readfirstlane'))
        self.is_dot = mn.startswith('v_dot')
        R = [regs_of(o) for o in ops]
        dst, src = [], []
        if self.label or not ops:
            pass
        elif self.is_mfma:
            dst = R[0]; src = R[1] + R[2] + R[3]
            self.srcC = R[3]; self.srcAB = R[1] + R[2]
            self.passes = 8 if '32x32' in mn else 4
        elif self.is_perm:
            dst = R[0] + R[1]; src = R[0] + R[1]
        elif self.is_valu:
            dst = R[0]; src = sum(R[1:], [])
            if mn.startswith(('v_add_co', 'v_sub_co', 'v_addc_co', 'v_subb_co', 'v_div_scale', 'v_mad_u64_u32')):
                dst = R[0] + R[1]; src = sum(R[2:], [])
            if mn.startswith(('v_fmac', 'v_dot2c', 'v_pk_fmac', 'v_writelane')) or self.is_dpp:
                src = src + R[0]
            if mn.startswith('v_cndmask') and len(ops) == 3:
                src = src + regs_of('vcc')
            if mn.startswith('v_cmpx'):
                dst = dst + regs_of('exec')
        elif self.is_ds:
            if mn.startswith(('ds_read', 'ds_bpermute', 'ds_permute', 'ds_swizzle')) or '_rtn' in mn:
                dst = R[0]; src = sum(R[1:], [])
            else:
                src = sum(R, [])
        elif self.is_vmem:
            if 'load' in mn and not self.is_lds_dma:
                dst = R[0]; src = sum(R[1:], [])
            elif 'atomic' in mn and 'sc0' in self.mods:
                dst = R[0]; src = sum(R, [])
            else:
                src = sum(R, [])
            if self.is_lds_dma:
                src = src + regs_of('m0')
        elif self.is_salu:
            if mn.startswith(NO_DST_S):
                src = sum(R, [])
            else:
                dst = R[0]; src = sum(R[1:], [])
                if 'saveexec' in mn:
                    dst = dst + regs_of('exec')
        self.dst = set(dst); self.src = set(src)
        self.wide_store = self.is_vmem and 'store' in mn and ('x3' in mn or 'x4' in mn)
        if self.wide_store:
            self.sdata = set(R[0]) if mn.startswith('buffer') else set(R[1])
        self.states = 1
        if mn == 's_nop':
            self.states = int(ops[0], 0) + 1
        if self.label:
            self.states = 0


XDL_C_OVER = {4: 6, 8: 10}
XDL_AB = {4: 8, 8: 12}
XDL_WAR = {4: 3, 8: 7}
EXEC = set(regs_of('exec'))
M0 = set(regs_of('m0'))


def need(p, c):
    n = 0
    pv = {r for r in p.dst if r[0] in 'va'}
    ps = {r for r in p.dst if r[0] == 's'}
    if p.is_mfma:
        if c.is_mfma:
            if pv & set(c.srcAB):
                n = max(n, XDL_AB[p.passes])
            cc = set(c.srcC)
            if pv & cc:
                if not (cc == pv and c.passes == p.passes):
                    n = max(n, XDL_C_OVER[p.passes])
            elif pv & c.dst:
                n = max(n, XDL_C_OVER[p.passes])
        elif c.is_valu or c.is_vmem or c.is_ds:
            if pv & (c.src | c.dst):
                n = max(n, XDL_AB[p.passes])
        if (c.is_valu or c.is_vmem or c.is_ds) and set(p.srcC) & c.dst:
            n = max(n, XDL_WAR[p.passes])
    if p.is_valu:
        if c.is_mfma and pv & c.src:
            n = max(n, 3 if p.is_dot else 2)
        if p.is_dot and (c.is_valu or c.is_vmem or c.is_ds) and pv & (c.src | c.dst):
            if not (c.mn == p.mn and c.dst == p.dst and not (pv & set(sum([regs_of(o) for o in c.ops[1:3]], [])))):
                n = max(n, 3)
        if p.is_trans and c.is_valu and not c.is_trans and pv & c.src:
            n = max(n, 1)
        if p.is_trans and (c.is_vmem or c.is_ds) and pv & c.src:
            n = max(n, 1)
        if c.is_dpp and pv & c.src:
            n = max(n, 2)
        if c.is_rl and pv & c.src:
            n = max(n, 1)
        if c.is_perm and pv & c.src:
            n = max(n, 2)
        if ps:
            if c.is_valu and ps & c.src:
                n = max(n, 4 if (c.is_rl or c.mn.startswith('v_writelane')) else 2)
            if c.is_mfma and ps & c.src:
                n = max(n, 2)
            if c.is_vmem and ps & c.src:
                n = max(n, 5)
            if c.is_salu and ps & c.src:
                n = max(n, 1)
            if ps & EXEC:
                if c.is_dpp: n = max(n, 5)
                if c.is_mfma or c.is_rl or c.is_perm: n = max(n, 4)
        if ('op_sel' in p.mods and not p.mn.startswith('v_pk_')) or 'dst_sel' in p.mods or 'sdwa' in p.mn:
            if c.is_valu and pv & (c.src | c.dst):
                n = max(n, 1)
    if p.is_salu and ps & M0 and (c.is_lds_dma or 'addtid' in c.mn):
        n = max(n, 1)
    if p.wide_store and p.sdata & c.dst:
        n = max(n, 2 if c.is_valu else 1)
    return n


STAMP_OFF = 24 << 20

class Prog:
    def __init__(self, prof=None):
        self.L = []
        self.prof = prof
        self.nend = 0

    def stamp(self, i):
        if self.prof is not None:
            r = 76 + 2*i if i < 7 else 96 + 2*(i - 8)
            self.L.append(f's_memrealtime s[{r}:{r+1}]')

    def mark(self, name):
        import os
        names = os.environ.get('STAMPS', '').split(',')
        if name in names:
            self.stamp([1, 2, 3, 4, 5, 6, 8, 9, 10][names.index(name)])
        if 'C' + name in names and self.prof is not None:
            self.stamp([1, 2, 3, 4, 5, 6, 8, 9, 10][names.index('C' + name)])
            self.L[-1] = self.L[-1].replace('s_memrealtime', 's_memtime')

    def end(self):
        if self.prof is None:
            self.L.append('s_endpgm'); return
        e = self.L.append
        import os
        if os.environ.get('SEG'):
            ra, rb = map(int, os.environ['SEG'].split(','))
            e('s_waitcnt vmcnt(0)'); e('s_memrealtime s[90:91]'); e('s_waitcnt lgkmcnt(0)')
            e(f's_sub_u32 s40, s{rb}, s{ra}'); e('s_lshl_b32 s40, s40, 3'); e('s_min_u32 s40, s40, 40000'); e('s_add_u32 s40, s40, 4000')
            if os.environ.get('SEGWG'):
                e(f's_cmp_eq_u32 s2, {os.environ["SEGWG"]}'); e('s_cselect_b32 s40, s40, 4000')
            e('SPIN_l:'); e('s_sleep 4'); e('s_memrealtime s[42:43]'); e('s_waitcnt lgkmcnt(0)'); e('s_sub_u32 s44, s42, s76')
            e('s_cmp_lt_u32 s44, s40'); e('s_cbranch_scc1 SPIN_l'); e('s_endpgm'); return
        if os.environ.get('SPIN'):
            r = int(os.environ['SPIN'])
            e('s_waitcnt vmcnt(0)'); e('s_memrealtime s[90:91]'); e('s_waitcnt lgkmcnt(0)')
            e(f's_sub_u32 s40, s{r}, s76'); e('s_min_u32 s40, s40, 20000')
            e('SPIN_l:'); e('s_memrealtime s[42:43]'); e('s_waitcnt lgkmcnt(0)'); e('s_sub_u32 s44, s42, s90')
            e('s_cmp_lt_u32 s44, s40'); e('s_cbranch_scc1 SPIN_l'); e('s_endpgm'); return
        if os.environ.get('DBGOUT'):
            e('s_waitcnt vmcnt(0)'); e('s_memrealtime s[90:91]'); e('s_waitcnt lgkmcnt(0)')
            e('s_cmp_lg_u32 s3, 0'); e('s_cbranch_scc1 DBG_x')
            e('s_mov_b64 exec, 1')
            e('s_not_b32 s40, s76'); e('v_mov_b32 v4, s40'); e('v_mov_b32 v5, s90'); e('v_mov_b32 v6, 0')
            e('buffer_atomic_umax v4, v6, s[24:27], 0 offen'); e('buffer_atomic_umax v5, v6, s[24:27], 0 offen offset:4')
            e('s_cmp_lg_u32 s2, 9'); e('s_cbranch_scc1 DBG_x')
            regs = [78, 80, 82, 84, 86, 88, 96, 98, 100, 90]
            for i, r in enumerate(regs):
                e(f's_sub_u32 s40, s{r}, s76'); e('v_mov_b32 v4, s40'); e(f'buffer_store_dword v4, v6, s[24:27], 0 offen offset:{8+4*i}')
            e('DBG_x:'); e('s_endpgm'); return
        e('s_waitcnt vmcnt(0)')
        e('s_memrealtime s[90:91]')
        e('v_mov_b32 v15, s95')
        e('s_load_dwordx2 s[92:93], s[0:1], 80')
        e('v_lshrrev_b32 v1, 6, v0'); e('v_lshlrev_b32 v1, 6, v1')
        e('v_and_b32 v0, 63, v0')
        e('s_waitcnt lgkmcnt(0)')
        e('s_and_b32 s93, s93, 0xffff'); e('s_mov_b32 s94, 0x4000000'); e('s_mov_b32 s95, 0x20000')
        for i in range(8): e(f'v_mov_b32 v{4+i}, s{76+2*i}')
        for i in range(3): e(f'v_mov_b32 v{12+i}, s{96+2*i}')
        e('s_lshl_b32 s76, s2, 10'); e(f's_add_u32 s76, s76, {STAMP_OFF + self.prof * (1 << 20)}')
        e('s_mov_b64 exec, 1')
        e('buffer_store_dwordx4 v[4:7], v1, s[92:95], s76 offen')
        e('buffer_store_dwordx4 v[8:11], v1, s[92:95], s76 offen offset:16')
        e('buffer_store_dwordx4 v[12:15], v1, s[92:95], s76 offen offset:32')
        e('s_endpgm')

    def e(self, text):
        for ln in text.split('\n'):
            ln = ln.strip()
            if ln:
                self.L.append(ln)
                self._bg(ln)

    bgq = None

    def background(self, ops, period):
        self.bgq = ops; self.bgp = period; self.bgc = 0; self.bgexec = True; self.bgscc = False

    def _bg(self, ln):
        if not self.bgq: return
        if 'exec' in ln and ln.startswith('s_'): self.bgexec = ln.endswith('exec, -1')
        if ln.startswith(('s_cmp', 's_or_b64', 's_sub_u32 s48')): self.bgscc = True
        if ln.startswith(('s_cbranch', 's_cselect')): self.bgscc = False
        self.bgc += 2 if ln.startswith(('v_mfma', 'v_cos', 'v_sin', 'v_exp', 'v_rcp', 'ds_')) else 1
        if self.bgc >= self.bgp and self.bgexec and not self.bgscc and ln.startswith('v_') and not ln.startswith('v_cmp'):
            q = self.bgq; self.bgq = None
            q.pop(0)()
            self.bgq = q; self.bgc = 0

    __call__ = e

    def finalize(self):
        out = []
        hists = [[]]
        saved = {}
        seen = {}
        back = []
        nops = 0

        def required(hist, ins):
            dist = 0; req = 0
            for p in reversed(hist):
                n = need(p, ins)
                if n - dist > req:
                    req = n - dist
                dist += p.states
                if dist > 20:
                    break
            return req

        for t in self.L:
            if t.startswith(('.', ';')) and not t.endswith(':'):
                out.append((t, None)); continue
            ins = Ins(t)
            if ins.label:
                name = t.split(':')[0].strip()
                seen[name] = len(out)
                hists = hists + saved.pop(name, [])
                if not hists:
                    hists = [[]]
                out.append((t, ins)); continue
            req = max(required(h, ins) for h in hists) if hists else 0
            while req > 0:
                k = min(req, 16)
                nop = Ins(f's_nop {k - 1}')
                out.append((f'  s_nop {k - 1}', nop)); nops += 1
                for h in hists: h.append(nop)
                req -= k
            for h in hists: h.append(ins)
            hists = [h[-24:] for h in hists]
            uniq = []
            for h in hists:
                if not any(len(u) == len(h) and all(x is y for x, y in zip(u, h)) for u in uniq):
                    uniq.append(h)
            hists = uniq
            out.append(('  ' + t, ins))
            if ins.mn.startswith(('s_branch', 's_cbranch')):
                tgt = ins.ops[0]
                if tgt in seen:
                    back.append((tgt, [list(h) for h in hists]))
                else:
                    saved.setdefault(tgt, []).extend([list(h) for h in hists])
            if ins.mn in ('s_endpgm', 's_branch'):
                hists = []
        for tgt, hs in back:
            for h in hs:
                h = list(h); n = 0
                for (t, ins) in out[seen[tgt]:]:
                    if ins is None or ins.label: continue
                    r = required(h, ins)
                    assert r <= 0, f'hazard across back edge to {tgt}: {t} needs {r} more'
                    h.append(ins); n += ins.states
                    if n > 20 or ins.mn in ('s_endpgm', 's_branch'): break
        assert not saved, saved.keys()
        self.nops = nops
        return '\n'.join(t for t, _ in out) + '\n'


class Cnt:
    def __init__(self, P, name, maxv):
        self.P = P; self.name = name; self.maxv = maxv; self.q = []; self.issued = set()
    def op(self, text, tag=None):
        self.P(text); self.q.append(tag); self.issued.add(tag)
    def wait(self, *tags):
        for t in tags: assert t in self.issued, t
        idx = -1
        for i, t in enumerate(self.q):
            if t in tags: idx = i
        if idx < 0: return
        n = len(self.q) - 1 - idx
        self.P(f's_waitcnt {self.name}({min(n, self.maxv)})')
        if n <= self.maxv: self.q = self.q[idx + 1:]
        else: self.q = self.q[len(self.q) - self.maxv:]
    def all(self):
        self.P(f's_waitcnt {self.name}(0)'); self.q = []
    def reset(self):
        self.q = []


def weave(P, main, fill, start=0, end=None):
    end = len(main) if end is None else end
    n = end - start; k = 0
    def go(x):
        if callable(x): x()
        else: P(x)
    for i, m in enumerate(main):
        go(m)
        if start <= i < end:
            tgt = (len(fill) * (i - start + 1) + n - 1) // n
            while k < tgt:
                go(fill[k]); k += 1
    while k < len(fill):
        go(fill[k]); k += 1


def header(launches, extra=''):
    s_ = extra
    for (k, g, b, lds) in launches:
        s_ += f'; @launch kernel={k} grid=({g},1,1) block=({b},1,1) lds={lds}\n'
    s_ += '.amdgcn_target "amdgcn-amd-amdhsa--gfx950"\n.text\n'
    return s_


def kbegin(name):
    return f'.globl {name}\n.p2align 8\n.type {name},@function\n{name}:\n'


def kdesc(name, vgpr, sgpr=102, accum=None):
    if accum is None:
        accum = min(256, (vgpr + 3) // 4 * 4)
    return f'''.p2align 6
.amdhsa_kernel {name}
  .amdhsa_next_free_vgpr {vgpr}
  .amdhsa_next_free_sgpr {sgpr}
  .amdhsa_accum_offset {accum}
  .amdhsa_group_segment_fixed_size 0
  .amdhsa_kernarg_size 88
  .amdhsa_user_sgpr_count 2
  .amdhsa_user_sgpr_kernarg_segment_ptr 1
  .amdhsa_system_sgpr_workgroup_id_x 1
  .amdhsa_float_denorm_mode_32 3
  .amdhsa_float_denorm_mode_16_64 3
.end_amdhsa_kernel
'''
```
